```python
import torch

def _softmax(x, axis=-1):
    return torch.softmax(x, dim=axis)
def _gelu(x):
    return torch.nn.functional.gelu(x, approximate="tanh")
def _silu(x):
    return torch.nn.functional.silu(x)
def _sigmoid(x):
    return torch.sigmoid(x)
def _layernorm(x, axis=-1, eps=1e-5):
    m = x.mean(dim=axis, keepdim=True)
    v = x.var(dim=axis, keepdim=True, unbiased=False)
    return (x - m) / torch.sqrt(v + eps)
def _scatter_add(tgt, idx, src, axis=0):
    return tgt.clone().index_add_(axis, idx, src)
def _segment_sum(src, seg, n):
    out = torch.zeros((n,) + src.shape[1:], dtype=src.dtype)
    return out.index_add_(0, seg, src)
def _pad(x, pw):
    flat = tuple(v for pair in reversed(pw) for v in pair)
    return torch.nn.functional.pad(x, flat)

kernel_name = 'concat_heads__mha_block_cached__gqa_block_cached__near_ridge'

def setup_inputs():

    _w = (lambda a: (lambda t: t.to(torch.bfloat16) if t.is_floating_point() else t)(torch.as_tensor(a)))
    def _A_setup():
        B, Sq, D = 8, 160, 576
        H, Sk, Dh = 32, 512, 128
        return {
            "x": _w((lambda *s: torch.randn(*s, dtype=torch.bfloat16) * 0.8)(B, Sq, D)),
            "k_cache": _w((lambda *s: torch.randn(*s, dtype=torch.bfloat16) * 0.8)(B, H, Sk, Dh)),
            "v_cache": _w((lambda *s: torch.randn(*s, dtype=torch.bfloat16) * 0.05)(B, H, Sk, Dh)),
            "wq": _w((lambda *s: torch.randn(*s, dtype=torch.bfloat16) * 0.8)(D, H * Dh) * (D ** -0.5)),
            "wo": _w((lambda *s: torch.randn(*s, dtype=torch.bfloat16) * 0.05)(H * Dh, D) * ((H * Dh) ** -0.5)),
        }
    _A_in = _A_setup()

    def _B_setup():
        B, Sq, D = 8, 160, 576
        Hq, Hkv, Sk, Dh = 32, 32, 512, 128
        assert Hq % Hkv == 0, (Hq, Hkv)
        return {
            "x": _w((lambda *s: torch.randn(*s, dtype=torch.bfloat16) * 0.8)(B, Sq, D)),
            "k_cache": _w((lambda *s: torch.randn(*s, dtype=torch.bfloat16) * 0.8)(B, Hkv, Sk, Dh)),
            "v_cache": _w((lambda *s: torch.randn(*s, dtype=torch.bfloat16) * 0.05)(B, Hkv, Sk, Dh)),
            "wq": _w((lambda *s: torch.randn(*s, dtype=torch.bfloat16) * 0.8)(D, Hq * Dh) * (D ** -0.5)),
            "wo": _w((lambda *s: torch.randn(*s, dtype=torch.bfloat16) * 0.05)(Hq * Dh, D) * ((Hq * Dh) ** -0.5)),
        }
    _B_in = _B_setup()

    return {
        "A_x": _A_in["x"],
        "A_k_cache": _A_in["k_cache"],
        "A_v_cache": _A_in["v_cache"],
        "A_wq": _A_in["wq"],
        "A_wo": _A_in["wo"],
        "B_x": _B_in["x"],
        "B_k_cache": _B_in["k_cache"],
        "B_v_cache": _B_in["v_cache"],
        "B_wq": _B_in["wq"],
        "B_wo": _B_in["wo"],
    }

def reference(A_x, A_k_cache, A_v_cache, A_wq, A_wo, B_x, B_k_cache, B_v_cache, B_wq, B_wo):
    def _A_ref(x, k_cache, v_cache, wq, wo):
        B, Sq, D = x.shape
        H, Dh = 32, 128
        q = (lambda x, *d: x.permute(*d))((x @ wq).reshape(B, Sq, H, Dh), 0, 2, 1, 3)
        scores = torch.einsum("bhqd,bhkd->bhqk", q, k_cache) * (Dh ** -0.5)
        p = _softmax(scores, axis=-1)
        o = torch.einsum("bhqk,bhkd->bhqd", p, v_cache)
        return (lambda x, *d: x.permute(*d))(o, 0, 2, 1, 3).reshape(B, Sq, H * Dh) @ wo

    def _B_ref(x, k_cache, v_cache, wq, wo):
        B, Sq, D = x.shape
        Hq, Dh = 32, 128
        Hkv = k_cache.shape[1]
        rep = Hq // Hkv
        q = (lambda x, *d: x.permute(*d))((x @ wq).reshape(B, Sq, Hq, Dh), 0, 2, 1, 3)
        k = (lambda x, n, axis: torch.repeat_interleave(x, n, dim=axis))(k_cache, rep, axis=1)
        v = (lambda x, n, axis: torch.repeat_interleave(x, n, dim=axis))(v_cache, rep, axis=1)
        scores = torch.einsum("bhqd,bhkd->bhqk", q, k) * (Dh ** -0.5)
        p = _softmax(scores, axis=-1)
        o = torch.einsum("bhqk,bhkd->bhqd", p, v)
        return (lambda x, *d: x.permute(*d))(o, 0, 2, 1, 3).reshape(B, Sq, Hq * Dh) @ wo

    a = _A_ref(A_x, A_k_cache, A_v_cache, A_wq, A_wo)
    b = _B_ref(B_x, B_k_cache, B_v_cache, B_wq, B_wo)
    return torch.concatenate([a, b], axis=-1)
```

```python
KNAME = "concat_heads__mha_block_cached__gqa_block_cached__near_ridge_kernel"

HEADER = """; Kernarg layout (104 bytes, ptrs only, base s[0:1]):
"""

class Asm:
    def __init__(self):
        self.lines = []
        self.nlabel = 0
    def __call__(self, s, *a):
        for l in s.split("\n"):
            l = l.strip()
            if l:
                self.lines.append("    " + l)
    def c(self, s):
        self.lines.append("    ; " + s)
    def label(self, name):
        self.lines.append(name + ":")
    def newlabel(self, base="L"):
        self.nlabel += 1
        return "%s_%d" % (base, self.nlabel)
    def raw(self, s):
        self.lines.append(s)
    def text(self):
        return "\n".join(self.lines) + "\n"

def kernel_begin(a, name):
    a.raw(".text")
    a.raw(".globl %s" % name)
    a.raw(".p2align 8")
    a.raw(".type %s,@function" % name)
    a.label(name)

def kernel_desc(a, name, vgpr, sgpr=102, accum=None, wgy=False):
    if accum is None:
        accum = (vgpr + 3) // 4 * 4
    a.raw('.section .rodata,"a"')
    a.raw(".p2align 6")
    a.raw(".amdhsa_kernel %s" % name)
    a.raw("  .amdhsa_next_free_vgpr %d" % vgpr)
    a.raw("  .amdhsa_next_free_sgpr %d" % sgpr)
    a.raw("  .amdhsa_accum_offset %d" % accum)
    a.raw("  .amdhsa_group_segment_fixed_size 0")
    a.raw("  .amdhsa_kernarg_size 104")
    a.raw("  .amdhsa_user_sgpr_count 2")
    a.raw("  .amdhsa_user_sgpr_kernarg_segment_ptr 1")
    a.raw("  .amdhsa_system_sgpr_workgroup_id_x 1")
    if wgy:
        a.raw("  .amdhsa_system_sgpr_workgroup_id_y 1")
    a.raw("  .amdhsa_float_denorm_mode_32 3")
    a.raw("  .amdhsa_float_denorm_mode_16_64 3")
    a.raw(".end_amdhsa_kernel")

def vr(base, n=1):
    return "v%d" % base if n == 1 else "v[%d:%d]" % (base, base + n - 1)
def ar(base, n=1):
    return "a%d" % base if n == 1 else "a[%d:%d]" % (base, base + n - 1)
def sr(base, n=1):
    return "s%d" % base if n == 1 else "s[%d:%d]" % (base, base + n - 1)
```

```python
from asmlib import *
import math

KRING = 0
VRING = 65536
XST = 81920
WST = 112640
LDS_BYTES = 163840

def ACC(T, j): return (T * 5 + j) * 4
def QF(ds, j): return 160 + (ds * 5 + j) * 4
def QACC(T, j): return 16 + (T * 5 + j) * 4
def BF(p, j): return p * 20 + j * 4
def AF(p, T): return 40 + p * 32 + T * 4
def S(p, j, t): return 16 + p * 40 + j * 8 + t * 4
def P(p, j): return 96 + p * 20 + j * 4
def NEGM(j): return 136 + j * 4
def KF(t, ds): return 156 + (t * 4 + ds) * 4
def VF(T): return 188 + T * 4
def TS(j): return 220 + j
def L(j): return 225 + j
TMP = 230
KADDR = 240
VADDR = 244
DOFF = 252
XADDR = 176
WADDR = 177
SOFF = 186
PKOFF = 200
PVOFF = 204
VLANE = 1; VI16 = 2; VG = 3
VT0 = 4; VT1 = 5; VT2 = 6; VT3 = 7; VT4 = 8; VT5 = 9

SRD_X = 8; SRD_W = 12; SRD_K = 16; SRD_V = 20; SRD_A = 24; SRD_O = 28
S_W = 32; S_U = 33; S_QH = 34; S_UU = 35
S_XOFF = 36; S_WOFF = 37; S_STG = 38; S_M0X = 39; S_M0W = 40; S_CNT = 41
S_RING = 42; S_STAGE = 43; S_SOFF = 44; S_T0 = 45; S_T1 = 46; S_T2 = 47
S_C = 48
S_THR = 50
S_RET = 52
S_WS = 54
S_KT = 56

SCALE = (128 ** -0.5) * math.log2(math.e)
import struct
def f2u(f): return struct.unpack("<I", struct.pack("<f", f))[0]

def interleave(main, extras):
    n = len(main)
    slots = [[] for _ in range(n + 1)]
    for lst, f0, f1 in extras:
        m = len(lst)
        for i, ins in enumerate(lst):
            pos = f0 + (f1 - f0) * (i + 0.5) / m
            k = min(n, max(0, int(pos * n)))
            slots[k].append((pos, ins))
    out = []
    for k in range(n + 1):
        for _, ins in sorted(slots[k], key=lambda t: t[0]):
            out.append(ins)
        if k < n:
            out.append(main[k])
    return out

def mfma(d, a, b, c, dk="v", ak="v", bk="v"):
    f = {"v": vr, "a": ar}
    cs = c if isinstance(c, str) else f[dk](c, 4)
    return "v_mfma_f32_16x16x32_bf16 %s, %s, %s, %s" % (f[dk](d, 4), f[ak](a, 4), f[bk](b, 4), cs)

NT = " nt"

EXP = set()
def gen_k1(a, name="k1_kernel", dbg=False, prof=False):
    kernel_begin(a, name)
    def stamp(i):
        if prof:
            a("%s s[%d:%d]" % ("s_memtime" if "cyc" in EXP else "s_memrealtime", 80 + 2 * i, 81 + 2 * i))
    a("s_cmp_ge_u32 s2, 256")
    a("s_cbranch_scc1 K1_END")
    stamp(0)
    a("s_and_b32 s3, s2, 7")
    a("s_lshr_b32 s4, s2, 3")
    a("s_lshr_b32 s5, s3, 2")
    a("s_and_b32 s6, s3, 3")
    a("s_lshr_b32 s7, s4, 2")
    a("s_and_b32 s4, s4, 3")
    a("s_lshl_b32 s6, s6, 3")
    a("s_lshl_b32 s4, s4, 1")
    a("s_add_u32 s6, s6, s4")
    a("s_mul_i32 s4, s5, 40")
    a("s_add_u32 s58, s0, s4")
    a("s_addc_u32 s59, s1, 0")
    a("s_load_dwordx8 s[60:67], s[58:59], 0")
    a("s_load_dwordx2 %s, s[0:1], 96" % sr(S_WS, 2))
    a("v_lshrrev_b32 v%d, 6, v0" % VT0)
    a("v_and_b32 v%d, 63, v0" % VLANE)
    a("v_readfirstlane_b32 s%d, v%d" % (S_W, VT0))
    a("v_and_b32 v%d, 15, v%d" % (VI16, VLANE))
    a("v_lshrrev_b32 v%d, 4, v%d" % (VG, VLANE))
    a("s_nop 1")
    a("s_lshr_b32 s%d, s%d, 1" % (S_U, S_W))
    a("s_and_b32 s%d, s%d, 1" % (S_QH, S_W))
    a("s_and_b32 s%d, s%d, 1" % (S_UU, S_W))
    a("s_mov_b32 s%d, 0x%x" % (S_C, f2u(SCALE)))
    a("s_mov_b32 s%d, 0x%x" % (S_C + 1, f2u(SCALE)))
    a("s_mov_b32 s%d, 0x%x" % (S_THR, f2u(16384.0)))
    a("s_waitcnt lgkmcnt(0)")
    a("s_mul_i32 s4, s7, 184320")
    a("s_add_u32 s%d, s60, s4" % SRD_X); a("s_addc_u32 s%d, s61, 0" % (SRD_X + 1))
    a("s_mov_b32 s%d, 184320" % (SRD_X + 2)); a("s_mov_b32 s%d, 0x20000" % (SRD_X + 3))
    a("s_lshl_b32 s4, s6, 8")
    a("s_add_u32 s%d, s66, s4" % SRD_W); a("s_addc_u32 s%d, s67, 0" % (SRD_W + 1))
    a("s_sub_u32 s%d, 4718592, s4" % S_KT)
    a("s_mov_b32 s%d, s%d" % (SRD_W + 2, S_KT)); a("s_mov_b32 s%d, 0x20000" % (SRD_W + 3))
    a("s_lshl_b32 s4, s7, 5")
    a("s_add_u32 s4, s4, s6")
    a("s_add_u32 s4, s4, s%d" % S_UU)
    a("s_lshl_b32 s4, s4, 17")
    a("s_add_u32 s%d, s62, s4" % SRD_K); a("s_addc_u32 s%d, s63, 0" % (SRD_K + 1))
    a("s_mov_b32 s%d, 131072" % (SRD_K + 2)); a("s_mov_b32 s%d, 0x20000" % (SRD_K + 3))
    a("s_add_u32 s%d, s64, s4" % SRD_V); a("s_addc_u32 s%d, s65, 0" % (SRD_V + 1))
    a("s_mov_b32 s%d, 131072" % (SRD_V + 2)); a("s_mov_b32 s%d, 0x20000" % (SRD_V + 3))
    a("s_cmp_lt_u32 s%d, 2" % S_W)
    a("s_cselect_b32 s%d, s%d, s%d" % (SRD_A, SRD_K, SRD_V))
    a("s_cselect_b32 s%d, s%d, s%d" % (SRD_A + 1, SRD_K + 1, SRD_V + 1))
    a("s_mov_b32 s%d, 131072" % (SRD_A + 2)); a("s_mov_b32 s%d, 0x20000" % (SRD_A + 3))
    a("s_mul_i32 s4, s5, 10485760")
    a("s_mul_i32 s3, s7, 1310720")
    a("s_add_u32 s4, s4, s3")
    a("s_add_u32 s3, s6, s%d" % S_U)
    a("s_lshl_b32 s3, s3, 8")
    a("s_add_u32 s4, s4, s3")
    a("s_mul_i32 s3, s%d, 655360" % S_QH)
    a("s_add_u32 s4, s4, s3")
    a("s_add_u32 s%d, s%d, s4" % (SRD_O, S_WS)); a("s_addc_u32 s%d, s%d, 0" % (SRD_O + 1, S_WS + 1))
    a("s_mov_b32 s%d, %d" % (SRD_O + 2, 79 * 8192 + 256)); a("s_mov_b32 s%d, 0x20000" % (SRD_O + 3))

    lane, i16, g = VLANE, VI16, VG
    a("s_lshl_b32 s3, s%d, 13" % S_U)
    a("v_lshlrev_b32 v%d, 8, v%d" % (VT0, i16))
    a("v_add_u32 v%d, s3, v%d" % (VT0, VT0))
    for ds in range(4):
        a("v_add_u32 v%d, %d, v%d" % (VT1, 4 * ds, g))
        a("v_xor_b32 v%d, v%d, v%d" % (VT1, VT1, i16))
        a("v_lshl_add_u32 v%d, v%d, 4, v%d" % (KADDR + ds, VT1, VT0))
    a("v_lshrrev_b32 v%d, 2, v%d" % (VT0, i16))
    a("v_lshl_add_u32 v%d, v%d, 2, v%d" % (VT1, g, VT0))
    a("v_and_b32 v%d, 7, v%d" % (VT2, VT1))
    a("v_lshlrev_b32 v%d, 1, v%d" % (VT2, VT2))
    a("v_and_b32 v%d, 3, v%d" % (VT3, i16))
    a("v_lshrrev_b32 v%d, 1, v%d" % (VT4, VT3))
    a("v_and_b32 v%d, 1, v%d" % (VT3, VT3))
    a("v_lshlrev_b32 v%d, 3, v%d" % (VT3, VT3))
    a("v_lshlrev_b32 v%d, 8, v%d" % (VT1, VT1))
    a("v_add_u32 v%d, v%d, v%d" % (VT1, VT1, VT3))
    a("s_add_u32 s4, s3, %d" % VRING)
    a("v_add_u32 v%d, s4, v%d" % (VT1, VT1))
    for T in range(8):
        a("v_add_u32 v%d, %d, v%d" % (VT5, 2 * T, VT4))
        a("v_xor_b32 v%d, v%d, v%d" % (VT5, VT5, VT2))
        a("v_lshl_add_u32 v%d, v%d, 4, v%d" % (VADDR + T, VT5, VT1))
    a("v_lshlrev_b32 v%d, 8, v%d" % (VT0, g))
    for t in range(4):
        a("v_add_u32 v%d, %d, v%d" % (VT1, 4 * t, g))
        a("v_xor_b32 v%d, v%d, v%d" % (VT1, VT1, i16))
        a("v_lshl_add_u32 v%d, v%d, 4, v%d" % (PKOFF + t, VT1, VT0))
    for t in range(2):
        a("v_add_u32 v%d, %d, v%d" % (VT1, 4 * t, g))
        a("v_lshlrev_b32 v%d, 1, v%d" % (VT1, VT1))
        a("v_xor_b32 v%d, v%d, v%d" % (VT1, VT1, i16))
        a("v_lshl_add_u32 v%d, v%d, 4, v%d" % (PVOFF + t, VT1, VT0))
    a("s_cmp_lt_u32 s%d, 2" % S_W)
    a("s_cselect_b64 vcc, -1, 0")
    for t in range(4):
        a("v_cndmask_b32 v%d, v%d, v%d, vcc" % (DOFF + t, PVOFF + (t & 1), PKOFF + t))
    a("s_cselect_b32 s%d, %d, %d" % (S_RING, KRING, VRING))
    a("s_lshl_b32 s3, s%d, 13" % S_UU)
    a("s_add_u32 s%d, s%d, s3" % (S_RING, S_RING))

    a("v_lshrrev_b32 v%d, 3, v%d" % (VT0, i16))
    a("v_mul_u32_u24 v%d, 3, v%d" % (VT0, VT0))
    a("v_xor_b32 v%d, v%d, v%d" % (VT0, VT0, g))
    a("v_lshlrev_b32 v%d, 4, v%d" % (VT0, VT0))
    a("v_lshl_add_u32 v%d, v%d, 6, v%d" % (VT0, i16, VT0))
    a("s_mul_i32 s3, s%d, %d" % (S_QH, 80 * 64))
    a("s_add_u32 s3, s3, %d" % XST)
    a("v_add_u32 v%d, s3, v%d" % (XADDR, VT0))
    a("v_lshrrev_b32 v%d, 2, v%d" % (VT0, i16))
    a("v_and_b32 v%d, 1, v%d" % (VT1, g))
    a("v_lshl_or_b32 v%d, v%d, 2, v%d" % (VT2, VT1, VT0))
    a("v_lshlrev_b32 v%d, 1, v%d" % (VT2, VT2))
    a("v_lshl_add_u32 v%d, v%d, 3, v%d" % (VT1, g, VT0))
    a("v_lshlrev_b32 v%d, 8, v%d" % (VT1, VT1))
    a("v_and_b32 v%d, 3, v%d" % (VT3, i16))
    a("v_lshrrev_b32 v%d, 1, v%d" % (VT4, VT3))
    a("v_and_b32 v%d, 1, v%d" % (VT3, VT3))
    a("v_lshl_add_u32 v%d, v%d, 3, v%d" % (VT1, VT3, VT1))
    a("s_lshl_b32 s3, s%d, 13" % S_U)
    a("s_add_u32 s3, s3, %d" % WST)
    a("v_add_u32 v%d, s3, v%d" % (VT1, VT1))
    for T in range(8):
        a("v_add_u32 v%d, %d, v%d" % (VT5, 2 * T, VT4))
        a("v_xor_b32 v%d, v%d, v%d" % (VT5, VT5, VT2))
        a("v_lshl_add_u32 v%d, v%d, 4, v%d" % (WADDR + T, VT5, VT1))
    a("v_lshrrev_b32 v%d, 5, v%d" % (VT0, lane))
    a("v_mul_u32_u24 v%d, 3, v%d" % (VT0, VT0))
    a("v_and_b32 v%d, 3, v%d" % (VT1, lane))
    a("v_xor_b32 v%d, v%d, v%d" % (VT0, VT0, VT1))
    a("v_lshlrev_b32 v%d, 4, v%d" % (VT0, VT0))
    a("v_lshrrev_b32 v%d, 2, v%d" % (VT1, lane))
    a("s_mul_i32 s3, s%d, 80" % S_UU)
    a("v_add_u32 v%d, s3, v%d" % (VT1, VT1))
    a("v_mul_u32_u24 v%d, 1152, v%d" % (VT1, VT1))
    a("v_add_u32 v%d, v%d, v%d" % (VT1, VT1, VT0))
    for t in range(5):
        a("v_add_u32 v%d, %d, v%d" % (SOFF + t, 16 * t * 1152 - (t & 3) * 1024, VT1))
    a("s_lshl_b32 s3, s%d, 8" % S_UU)
    a("v_lshlrev_b32 v%d, 13, v%d" % (VT0, g))
    a("v_add_u32 v%d, s3, v%d" % (VT0, VT0))
    for t in range(8):
        a("v_or_b32 v%d, %d, v%d" % (VT1, ((t >> 1) & 1) << 2, g))
        a("v_lshlrev_b32 v%d, 1, v%d" % (VT1, VT1))
        a("v_xor_b32 v%d, v%d, v%d" % (VT1, VT1, i16))
        a("v_lshl_add_u32 v%d, v%d, 4, v%d" % (VT1, VT1, VT0))
        a("v_add_u32 v%d, %d, v%d" % (SOFF + 5 + t, 4 * t * 8192 - (t & 3) * 1024, VT1))
    a("s_mul_i32 s%d, s%d, 5120" % (S_M0X, S_UU)); a("s_add_u32 s%d, s%d, %d" % (S_M0X, S_M0X, XST))
    a("s_lshl_b32 s%d, s%d, 13" % (S_M0W, S_UU)); a("s_add_u32 s%d, s%d, %d" % (S_M0W, S_M0W, WST))

    def stage_dma(buf):
        l = []
        l.append("s_add_u32 m0, s%d, %d" % (S_M0X, buf * 10240))
        l.append("s_nop 0")
        for t in range(4):
            l.append("buffer_load_dwordx4 v%d, %s, s%d offen offset:%d lds" % (SOFF + t, sr(SRD_X, 4), S_XOFF, t * 1024))
        l.append("s_add_u32 m0, s%d, %d" % (S_M0X, buf * 10240 + 4096))
        l.append("s_nop 0")
        l.append("buffer_load_dwordx4 v%d, %s, s%d offen lds" % (SOFF + 4, sr(SRD_X, 4), S_XOFF))
        for hh in range(2):
            l.append("s_add_u32 m0, s%d, %d" % (S_M0W, buf * 16384 + hh * 4096))
            l.append("s_nop 0")
            for t in range(4):
                l.append("buffer_load_dwordx4 v%d, %s, s%d offen offset:%d lds" % (SOFF + 5 + hh * 4 + t, sr(SRD_W, 4), S_WOFF, t * 1024))
        return l

    def stage_adv():
        return ["s_add_u32 s%d, s%d, 1" % (S_STG, S_STG),
                "s_add_u32 s%d, s%d, 64" % (S_XOFF, S_XOFF),
                "s_add_u32 s%d, s%d, 262144" % (S_WOFF, S_WOFF),
                "s_cmp_lt_u32 s%d, 18" % S_STG,
                "s_cselect_b32 s%d, 184320, 0" % (SRD_X + 2),
                "s_cselect_b32 s%d, s%d, 0" % (SRD_W + 2, S_KT)]

    def frag_reads(buf, p):
        l = []
        for j in range(5):
            l.append("ds_read_b128 %s, v%d offset:%d" % (ar(BF(p, j), 4), XADDR, buf * 10240 + j * 1024))
        for T in range(8):
            for h in range(2):
                l.append("ds_read_b64_tr_b16 %s, v%d offset:%d" % (ar(AF(p, T) + 2 * h, 2), WADDR + T, buf * 16384 + h * 1024))
        return l

    a("s_mov_b32 s%d, 0" % S_STG); a("s_mov_b32 s%d, 0" % S_XOFF); a("s_mov_b32 s%d, 0" % S_WOFF)
    a("s_cmp_lt_u32 s%d, 2" % S_W)
    a("s_cbranch_scc0 K1_PB")
    for variant in (0, 1):
        if variant == 0:
            for st in range(3):
                for ins in stage_dma(st): a(ins)
                for ins in stage_adv(): a(ins)
        else:
            a.label("K1_PB")
            for st in range(4):
                for hh in range(2):
                    a("s_lshl_b32 s3, s%d, 13" % S_UU)
                    a("s_add_u32 m0, s3, %d" % (KRING + st * 16384 + hh * 4096))
                    a("s_mov_b32 s4, %d" % (st * 8192 + hh * 4096))
                    for t in range(4):
                        a("buffer_load_dwordx4 v%d, %s, s4 offen offset:%d%s lds" % (PKOFF + t, sr(SRD_K, 4), t * 1024, NT))
            for hh in range(2):
                a("s_lshl_b32 s3, s%d, 13" % S_UU)
                a("s_add_u32 m0, s3, %d" % (VRING + hh * 4096))
                a("s_mov_b32 s4, %d" % (hh * 4096))
                for t in range(4):
                    a("buffer_load_dwordx4 v%d, %s, s4 offen offset:%d%s lds" % (PVOFF + (t & 1), sr(SRD_V, 4), t * 1024, NT))
        for r in range(160):
            a("v_mov_b32 v%d, 0" % (16 + r))
        if variant == 0:
            a("s_waitcnt vmcnt(26)")
        a("s_barrier")
        stamp(1)
        for ins in frag_reads(0, 0): a(ins)
        a("s_mov_b32 s%d, 0" % S_CNT)
        lab = "K1_QL%d" % variant
        a.label(lab)
        for i in range(6):
            p = i & 1
            if variant == 0:
                a("s_waitcnt vmcnt(13) lgkmcnt(0)")
            else:
                a("s_waitcnt lgkmcnt(0)")
            a("s_barrier")
            main = []
            for T in range(8):
                for j in range(5):
                    main.append(mfma(QACC(T, j), AF(p, T), BF(p, j), QACC(T, j), "v", "a", "a"))
            extras = [(frag_reads((i + 1) % 3, 1 - p), 0.0, 0.8)]
            if variant == 0:
                extras.append((stage_dma(i % 3) + stage_adv(), 0.0, 1.0))
            for ins in interleave(main, extras): a(ins)
        a("s_add_u32 s%d, s%d, 1" % (S_CNT, S_CNT))
        a("s_cmp_lt_u32 s%d, 3" % S_CNT)
        a("s_cbranch_scc1 %s" % lab)
        if variant == 0:
            a("s_branch K1_QEPI")
    a.label("K1_QEPI")
    stamp(2)
    a("s_waitcnt vmcnt(0) lgkmcnt(0)")
    a("s_barrier")
    a("s_cmp_lt_u32 s%d, 2" % S_W)
    a("s_cselect_b32 s%d, 4, 1" % S_STAGE)
    def att_dma():
        l = []
        l.append("s_and_b32 s%d, s%d, 3" % (S_T0, S_STAGE))
        l.append("s_lshl_b32 s%d, s%d, 14" % (S_T0, S_T0))
        l.append("s_add_u32 s%d, s%d, s%d" % (S_T0, S_T0, S_RING))
        l.append("s_lshl_b32 s%d, s%d, 13" % (S_SOFF, S_STAGE))
        l.append("s_mov_b32 m0, s%d" % S_T0)
        l.append("s_add_u32 s%d, s%d, 4096" % (S_T1, S_SOFF))
        for t in range(4):
            l.append("buffer_load_dwordx4 v%d, %s, s%d offen offset:%d%s lds" % (DOFF + t, sr(SRD_A, 4), S_SOFF, t * 1024, NT))
        l.append("s_add_u32 m0, s%d, 4096" % S_T0)
        l.append("s_add_u32 s%d, s%d, 1" % (S_STAGE, S_STAGE))
        for t in range(4):
            l.append("buffer_load_dwordx4 v%d, %s, s%d offen offset:%d%s lds" % (DOFF + t, sr(SRD_A, 4), S_T1, t * 1024, NT))
        return l
    a("s_cbranch_scc1 K1_NOV1")
    for ins in att_dma(): a(ins)
    a.label("K1_NOV1")

    def k_reads(stage):
        slot = stage & 3
        return ["ds_read_b128 %s, v%d offset:%d" % (vr(KF(t, ds), 4), KADDR + ds, slot * 16384 + t * 4096)
                for t in range(2) for ds in range(4)]
    def v_reads(stage):
        slot = stage & 3
        return ["ds_read_b64_tr_b16 %s, v%d offset:%d" % (vr(VF(T) + 2 * h, 2), VADDR + T, slot * 16384 + h * 4096)
                for T in range(8) for h in range(2)]
    a("s_nop 7")
    for kk in (3, 2, 1, 0):
        if kk == 2:
            for ins in k_reads(0): a(ins)
        for j in range(5):
            X = QACC(2 * kk, j); Y = QACC(2 * kk + 1, j)
            for r in (X, X + 2, Y, Y + 2):
                a("v_pk_mul_f32 %s, %s, %s" % (vr(r, 2), vr(r, 2), sr(S_C, 2)))
            a("v_cvt_pk_bf16_f32 v%d, v%d, v%d" % (X, X, X + 1))
            a("v_cvt_pk_bf16_f32 v%d, v%d, v%d" % (X + 1, X + 2, X + 3))
            a("v_cvt_pk_bf16_f32 v%d, v%d, v%d" % (Y, Y, Y + 1))
            a("v_cvt_pk_bf16_f32 v%d, v%d, v%d" % (Y + 1, Y + 2, Y + 3))
            a("s_nop 1")
            a("v_permlane32_swap_b32 v%d, v%d" % (X, Y))
            a("v_permlane32_swap_b32 v%d, v%d" % (X + 1, Y + 1))
            a("s_nop 1")
            a("v_permlane16_swap_b32 v%d, v%d" % (X, Y))
            a("v_permlane16_swap_b32 v%d, v%d" % (X + 1, Y + 1))
            a("s_nop 1")
            q = QF(kk, j)
            a("v_accvgpr_write_b32 a%d, v%d" % (q, X))
            a("v_accvgpr_write_b32 a%d, v%d" % (q + 1, X + 1))
            a("v_accvgpr_write_b32 a%d, v%d" % (q + 2, Y))
            a("v_accvgpr_write_b32 a%d, v%d" % (q + 3, Y + 1))

    if dbg:
        a("s_add_u32 s72, s%d, %d" % (S_WS, 64 << 20)); a("s_addc_u32 s73, s%d, 0" % (S_WS + 1))
        a("s_mov_b32 s74, 0x4000000"); a("s_mov_b32 s75, 0x20000")
        a("s_lshl_b32 s3, s2, 2"); a("s_add_u32 s3, s3, s%d" % S_W); a("s_mul_i32 s3, s3, %d" % (80 * 256))
        a("v_lshlrev_b32 v%d, 2, v%d" % (VT0, VLANE))
        for r in range(80):
            a("v_accvgpr_read_b32 v%d, a%d" % (VT1, 160 + r))
            a("s_add_u32 s4, s3, %d" % (r * 256))
            a("buffer_store_dword v%d, v%d, s[72:75], s4 offen" % (VT1, VT0))
        a("s_waitcnt vmcnt(0)")

    def qk_mfmas(p, first_c):
        l = []
        for j in range(5):
            for t in range(2):
                for ds in range(4):
                    c = (first_c(j) if ds == 0 else S(p, j, t))
                    l.append(mfma(S(p, j, t), KF(t, ds), QF(ds, j), c, "v", "v", "a"))
        return l
    def pv_mfmas(pp, zero=False):
        l = []
        for j in range(5):
            for T in range(8):
                l.append(mfma(ACC(T, j), VF(T), P(pp, j), "0" if zero else ACC(T, j), "a", "v", "v"))
        return l
    def softmax_tile(p, j, tb):
        l = []
        s = [S(p, j, 0) + i for i in range(4)] + [S(p, j, 1) + i for i in range(4)]
        e = [tb + i for i in range(8)]
        l.append("v_exp_f32 v%d, v%d" % (e[0], s[0]))
        l.append("v_exp_f32 v%d, v%d" % (e[1], s[1]))
        l.append("v_exp_f32 v%d, v%d" % (e[2], s[2]))
        l.append("v_add_f32 v%d, v%d, v%d" % (TS(j), e[0], e[1]))
        l.append("v_exp_f32 v%d, v%d" % (e[3], s[3]))
        l.append("v_cvt_pk_bf16_f32 v%d, v%d, v%d" % (P(p, j), e[0], e[1]))
        l.append("v_add_f32 v%d, v%d, v%d" % (TS(j), TS(j), e[2]))
        l.append("v_exp_f32 v%d, v%d" % (e[4], s[4]))
        l.append("v_add_f32 v%d, v%d, v%d" % (TS(j), TS(j), e[3]))
        l.append("v_cvt_pk_bf16_f32 v%d, v%d, v%d" % (P(p, j) + 1, e[2], e[3]))
        l.append("v_exp_f32 v%d, v%d" % (e[5], s[5]))
        l.append("v_add_f32 v%d, v%d, v%d" % (TS(j), TS(j), e[4]))
        l.append("v_exp_f32 v%d, v%d" % (e[6], s[6]))
        l.append("v_add_f32 v%d, v%d, v%d" % (TS(j), TS(j), e[5]))
        l.append("v_cvt_pk_bf16_f32 v%d, v%d, v%d" % (P(p, j) + 2, e[4], e[5]))
        l.append("v_exp_f32 v%d, v%d" % (e[7], s[7]))
        l.append("v_add_f32 v%d, v%d, v%d" % (TS(j), TS(j), e[6]))
        l.append("v_nop")
        l.append("v_add_f32 v%d, v%d, v%d" % (TS(j), TS(j), e[7]))
        l.append("v_cvt_pk_bf16_f32 v%d, v%d, v%d" % (P(p, j) + 3, e[6], e[7]))
        return l
    def xlane(op, x, t1, t2):
        l = []
        for sw in ("v_permlane32_swap_b32", "v_permlane16_swap_b32"):
            l.append("v_mov_b32 v%d, v%d" % (t1, x))
            l.append("v_mov_b32 v%d, v%d" % (t2, x))
            l.append("s_nop 1")
            l.append("%s v%d, v%d" % (sw, t1, t2))
            l.append("s_nop 1")
            l.append("%s v%d, v%d, v%d" % (op, x, t1, t2))
        return l
    def tile_max(p, j, x):
        s = [S(p, j, 0) + i for i in range(4)] + [S(p, j, 1) + i for i in range(4)]
        return ["v_max3_f32 v%d, v%d, v%d, v%d" % (x, s[0], s[1], s[2]),
                "v_max3_f32 v%d, v%d, v%d, v%d" % (x, x, s[3], s[4]),
                "v_max3_f32 v%d, v%d, v%d, v%d" % (x, x, s[5], s[6]),
                "v_max_f32 v%d, v%d, v%d" % (x, x, s[7])]

    a("s_waitcnt lgkmcnt(0)")
    a("s_nop 1")
    for ins in qk_mfmas(0, lambda j: "0"): a(ins)
    for ins in k_reads(1): a(ins)
    a("s_nop 7")
    for j in range(5):
        x = TMP
        for ins in tile_max(0, j, x): a(ins)
        for ins in xlane("v_max_f32", x, TMP + 1, TMP + 2): a(ins)
        for i in range(8):
            r = S(0, j, i >> 2) + (i & 3)
            a("v_sub_f32 v%d, v%d, v%d" % (r, r, x))
        for i in range(4):
            a("v_sub_f32 v%d, 0, v%d" % (NEGM(j) + i, x))
        a("v_mov_b32 v%d, 0" % L(j))

    def iteration(s, do_qk=True, do_pv=True, pv_zero=False, do_kread=True, do_dma=True, ndma=1, vm=16):
        p = s & 1
        a.c("---- iteration s=%s ----" % s)
        a("s_waitcnt vmcnt(%d) lgkmcnt(0)" % vm)
        if "nobar" not in EXP: a("s_barrier")
        first = qk_mfmas(1 - p, NEGM) if do_qk else []
        second = pv_mfmas(1 - p, pv_zero) if do_pv else []
        sm = []
        for j in range(5):
            sm += softmax_tile(p, j, TMP)
        vrd = v_reads(s - 1) if do_pv else []
        krd = k_reads(s + 2) if do_kread else []
        dma = []
        if do_dma:
            for _ in range(ndma): dma += att_dma()
        if "nosm" in EXP: sm = sm[:4]
        if "noexp" in EXP: sm = [x for x in sm if not x.startswith("v_exp")]
        if "nolds" in EXP: vrd = []; krd = []
        if "nodma" in EXP: dma = []
        if "nomfma" in EXP:
            first = first[:2]; second = second[:2]
        nf, ns = len(first), len(second)
        tot = nf + ns
        if tot == 0:
            for ins in sm: a(ins)
        else:
            main = first + (["s_waitcnt lgkmcnt(0)"] if (do_pv and vrd) else []) + second
            n = len(main)
            fmid = (nf + 0.5) / n if nf else 0.0
            extras = [(sm, 0.0, 1.0)]
            if vrd:
                if nf:
                    extras.append((vrd, 0.0, max(0.05, fmid * 0.6)))
                else:
                    for ins in vrd: a(ins)
            if krd and ns:
                extras.append((krd, (nf + 2.0) / n, 0.95))
            if dma:
                extras.append((dma, 0.02, 0.9))
            for ins in interleave(main, extras): a(ins)
            if krd and not ns:
                for ins in krd: a(ins)
        a("v_max3_f32 v%d, v%d, v%d, v%d" % (TMP + 8, TS(0), TS(1), TS(2)))
        a("v_max3_f32 v%d, v%d, v%d, v%d" % (TMP + 8, TMP + 8, TS(3), TS(4)))
        a("v_cmp_nge_f32 vcc, s%d, v%d" % (S_THR, TMP + 8))
        lab = a.newlabel("K1_OK")
        a("s_cbranch_vccz %s" % lab)
        a("s_call_b64 %s, K1_FB%d" % (sr(S_RET, 2), p if do_qk else 2 + p))
        a.label(lab)
        for j in range(5):
            a("v_add_f32 v%d, v%d, v%d" % (L(j), L(j), TS(j)))

    a("s_waitcnt lgkmcnt(0)")
    a("s_barrier")
    a("s_cmp_lt_u32 s%d, 2" % S_W)
    a("s_cbranch_scc0 K1_NOK4")
    for ins in att_dma(): a(ins)
    a.label("K1_NOK4")
    stamp(3)
    iteration(0, do_pv=False)
    iteration(1, pv_zero=True)
    a("s_mov_b32 s%d, 0" % S_CNT)
    a.label("K1_AL")
    for s in range(2, 6):
        iteration(s)
    a("s_add_u32 s%d, s%d, 1" % (S_CNT, S_CNT))
    a("s_cmp_lt_u32 s%d, 3" % S_CNT)
    a("s_cbranch_scc1 K1_AL")
    stamp(4)
    iteration(14, do_kread=False, do_dma=False)
    iteration(15, do_qk=False, do_kread=False, do_dma=False, vm=8)
    stamp(5)
    a("s_waitcnt vmcnt(0) lgkmcnt(0)")
    a("s_barrier")
    for ins in v_reads(15): a(ins)
    for j in range(5):
        for ins in xlane("v_add_f32", L(j), TMP, TMP + 1): a(ins)
        a("v_rcp_f32 v%d, v%d" % (L(j), L(j)))
    a("s_waitcnt lgkmcnt(0)")
    for ins in pv_mfmas(1): a(ins)
    a("s_nop 7")
    a("v_lshlrev_b32 v%d, 13, v%d" % (VT0, VI16))
    a("v_lshl_add_u32 v%d, v%d, 4, v%d" % (VT0, VG, VT0))
    for j in range(5):
        a("s_mov_b32 s3, %d" % (j * 16 * 8192))
        for kk in range(4):
            tb = 16 + ((j * 4 + kk) % 4) * 8
            X = tb; Y = tb + 4
            for i in range(4):
                a("v_accvgpr_read_b32 v%d, a%d" % (X + i, ACC(2 * kk, j) + i))
                a("v_accvgpr_read_b32 v%d, a%d" % (Y + i, ACC(2 * kk + 1, j) + i))
            for i in range(4):
                a("v_mul_f32 v%d, v%d, v%d" % (X + i, X + i, L(j)))
                a("v_mul_f32 v%d, v%d, v%d" % (Y + i, Y + i, L(j)))
            a("v_cvt_pk_bf16_f32 v%d, v%d, v%d" % (X, X, X + 1))
            a("v_cvt_pk_bf16_f32 v%d, v%d, v%d" % (X + 1, X + 2, X + 3))
            a("v_cvt_pk_bf16_f32 v%d, v%d, v%d" % (X + 2, Y, Y + 1))
            a("v_cvt_pk_bf16_f32 v%d, v%d, v%d" % (X + 3, Y + 2, Y + 3))
            a("s_nop 1")
            a("v_permlane32_swap_b32 v%d, v%d" % (X, X + 2))
            a("v_permlane32_swap_b32 v%d, v%d" % (X + 1, X + 3))
            a("s_nop 1")
            a("v_permlane16_swap_b32 v%d, v%d" % (X, X + 2))
            a("v_permlane16_swap_b32 v%d, v%d" % (X + 1, X + 3))
            a("s_nop 1")
            a("buffer_store_dwordx4 %s, v%d, %s, s3 offen offset:%d" % (vr(X, 4), VT0, sr(SRD_O, 4), kk * 64))
    stamp(6)
    a("s_waitcnt vmcnt(0)")
    stamp(7)
    if prof:
        a("s_waitcnt lgkmcnt(0)")
        a("s_add_u32 s72, s%d, %d" % (S_WS, 200 << 20)); a("s_addc_u32 s73, s%d, 0" % (S_WS + 1))
        a("s_mov_b32 s74, 0x100000"); a("s_mov_b32 s75, 0x20000")
        a("s_lshl_b32 s3, s2, 2"); a("s_add_u32 s3, s3, s%d" % S_W); a("s_lshl_b32 s3, s3, 5")
        for i in range(8):
            a("v_mov_b32 v%d, s%d" % (16 + i, 80 + 2 * i))
        a("v_mov_b32 v%d, 0" % VT0)
        a("v_cmp_eq_u32 vcc, 0, v%d" % VLANE)
        a("s_and_saveexec_b64 s[76:77], vcc")
        a("buffer_store_dwordx4 v[16:19], v%d, s[72:75], s3 offen" % VT0)
        a("buffer_store_dwordx4 v[20:23], v%d, s[72:75], s3 offen offset:16" % VT0)
        a("s_waitcnt vmcnt(0)")
    a.label("K1_END")
    a("s_endpgm")

    for var in range(4):
        p = var & 1
        has_next = var < 2
        a.label("K1_FB%d" % var)
        a("s_nop 7"); a("s_nop 7")
        for j in range(5):
            x = TMP + 8
            for ins in tile_max(p, j, x): a(ins)
            for ins in xlane("v_max_f32", x, TMP, TMP + 1): a(ins)
            a("v_max_f32 v%d, 0, v%d" % (x, x))
            a("v_sub_f32 v%d, 0, v%d" % (TMP + 9, x))
            a("v_exp_f32 v%d, v%d" % (TMP + 9, TMP + 9))
            for i in range(4):
                a("v_sub_f32 v%d, v%d, v%d" % (NEGM(j) + i, NEGM(j) + i, x))
            for i in range(8):
                r = S(p, j, i >> 2) + (i & 3)
                a("v_sub_f32 v%d, v%d, v%d" % (r, r, x))
                if has_next:
                    r = S(1 - p, j, i >> 2) + (i & 3)
                    a("v_sub_f32 v%d, v%d, v%d" % (r, r, x))
            a("v_mul_f32 v%d, v%d, v%d" % (L(j), L(j), TMP + 9))
            for T in range(8):
                for i in range(4):
                    r = ACC(T, j) + i
                    a("v_accvgpr_read_b32 v%d, a%d" % (TMP, r))
                    a("s_nop 0")
                    a("v_mul_f32 v%d, v%d, v%d" % (TMP, TMP, TMP + 9))
                    a("s_nop 0")
                    a("v_accvgpr_write_b32 a%d, v%d" % (r, TMP))
            for ins in softmax_tile(p, j, TMP): a(ins)
        a("s_nop 3")
        a("s_setpc_b64 %s" % sr(S_RET, 2))

if __name__ == "__main__":
    a = Asm()
    a.raw(HEADER.rstrip())
    a.raw("; @launch kernel=k1_kernel grid=(256,1,1) block=(256,1,1) lds=%d" % LDS_BYTES)
    a.raw('.amdgcn_target "amdgcn-amd-amdhsa--gfx950"')
    import sys
    for x in sys.argv[1:]:
        EXP.add(x)
    gen_k1(a, dbg=("dbg" in sys.argv), prof=("prof" in sys.argv))
    kernel_desc(a, "k1_kernel", 512, accum=256)
    open("k1%s.s" % "".join("_" + x for x in sys.argv[1:]), "w").write(a.text())
```

```python
from asmlib import *
from k1 import interleave, mfma

OST = 0
WOST = 81920
K2_LDS = 81920 + 4 * 18432
PART_OFF = 32 << 20

def ACC(T, j): return 16 + (T * 5 + j) * 4
def BF(p, j): return 116 + p * 20 + j * 4
def AF(p, T): return 156 + p * 20 + T * 4
OADDR = 196
WADDR = 198
OOFF = 200
WOFF = 205
VLANE = 1; VI16 = 2; VG = 3
VT0 = 4; VT1 = 5; VT2 = 6; VT3 = 7; VT4 = 8; VT5 = 9
SRD_O = 8; SRD_W = 12; SRD_P = 16; SRD_OUT = 20
S_W = 32; S_RH = 33; S_CH = 34; S_KQ = 35; S_GRP = 36
S_OOFF = 37; S_WOFF = 38; S_STG = 39; S_M0O = 40; S_M0W = 41; S_CNT = 42; S_WSZ = 43
S_WS = 54; S_DBG = 56

def gen_k2(a, name="k2_kernel", prof=False):
    kernel_begin(a, name)
    def stamp(i):
        if prof:
            a("s_memrealtime s[%d:%d]" % (80 + 2 * i, 81 + 2 * i))
    a("s_cmp_ge_u32 s2, 256")
    a("s_cbranch_scc1 K2_END")
    stamp(0)
    a("s_and_b32 s3, s2, 7")
    a("s_lshr_b32 s4, s2, 3")
    a("s_lshr_b32 s5, s3, 2")
    a("s_and_b32 s%d, s3, 3" % S_KQ)
    a("s_lshr_b32 s7, s4, 2")
    a("s_and_b32 s6, s4, 3")
    a("s_mul_i32 s4, s5, 40")
    a("s_add_u32 s58, s0, s4")
    a("s_addc_u32 s59, s1, 0")
    a("s_load_dwordx2 s[60:61], s[58:59], 32")
    a("s_load_dwordx4 s[64:67], s[0:1], 80")
    a("s_load_dwordx2 %s, s[0:1], 96" % sr(S_WS, 2))
    a("v_lshrrev_b32 v%d, 6, v0" % VT0)
    a("v_and_b32 v%d, 63, v0" % VLANE)
    a("v_readfirstlane_b32 s%d, v%d" % (S_W, VT0))
    a("v_and_b32 v%d, 15, v%d" % (VI16, VLANE))
    a("v_lshrrev_b32 v%d, 4, v%d" % (VG, VLANE))
    a("s_nop 1")
    a("s_and_b32 s%d, s%d, 1" % (S_RH, S_W))
    a("s_lshr_b32 s%d, s%d, 1" % (S_CH, S_W))
    a("s_lshl_b32 s3, s5, 3"); a("s_add_u32 s3, s3, s7"); a("s_lshl_b32 s3, s3, 2"); a("s_add_u32 s%d, s3, s6" % S_GRP)
    lane, i16, g = VLANE, VI16, VG
    a("s_mul_i32 s3, s%d, 5" % S_W)
    for i in range(5):
        a("s_add_u32 s4, s3, %d" % i)
        a("s_lshl_b32 s8, s4, 2")
        a("v_add_u32 v%d, s8, v%d" % (VT0, g))
        a("v_and_b32 v%d, 7, v%d" % (VT0, VT0))
        a("v_and_b32 v%d, 7, v%d" % (VT1, lane))
        a("v_xor_b32 v%d, v%d, v%d" % (VT0, VT0, VT1))
        a("v_lshlrev_b32 v%d, 4, v%d" % (VT0, VT0))
        a("v_lshrrev_b32 v%d, 3, v%d" % (VT1, lane))
        a("s_lshl_b32 s8, s4, 3")
        a("v_add_u32 v%d, s8, v%d" % (VT1, VT1))
        a("v_lshl_add_u32 v%d, v%d, 13, v%d" % (OOFF + i, VT1, VT0))
    a("s_mul_i32 s%d, s%d, 5120" % (S_M0O, S_W))
    a("s_mul_i32 s3, s%d, 5" % S_W)
    a("s_lshl_b32 s4, s%d, 2" % S_W); a("s_add_u32 s4, s4, 2")
    a("s_cmp_lt_u32 s%d, 2" % S_W)
    a("s_cselect_b32 s3, s3, s4")
    a("s_lshl_b32 s%d, s3, 10" % S_M0W); a("s_add_u32 s%d, s%d, %d" % (S_M0W, S_M0W, WOST))
    a("s_mov_b32 s9, 0x%x" % ((1 << 32) // 18 + 1))
    for i in range(5):
        a("s_add_u32 s4, s3, %d" % i)
        a("s_lshl_b32 s4, s4, 6")
        a("v_add_u32 v%d, s4, v%d" % (VT0, lane))
        a("v_mul_hi_u32 v%d, v%d, s9" % (VT1, VT0))
        a("v_mul_u32_u24 v%d, 18, v%d" % (VT2, VT1))
        a("v_sub_u32 v%d, v%d, v%d" % (VT2, VT0, VT2))
        a("v_and_b32 v%d, 0xfffffff3, v%d" % (VT3, VT1))
        a("v_and_b32 v%d, 4, v%d" % (VT4, VT1))
        a("v_lshl_or_b32 v%d, v%d, 1, v%d" % (VT3, VT4, VT3))
        a("v_and_b32 v%d, 8, v%d" % (VT4, VT1))
        a("v_lshrrev_b32 v%d, 1, v%d" % (VT4, VT4))
        a("v_or_b32 v%d, v%d, v%d" % (VT3, VT3, VT4))
        a("v_mul_u32_u24 v%d, 1152, v%d" % (VT3, VT3))
        a("v_lshl_add_u32 v%d, v%d, 4, v%d" % (WOFF + i, VT2, VT3))
    a("s_mul_i32 s3, s%d, %d" % (S_RH, 80 * 128))
    a("v_lshlrev_b32 v%d, 7, v%d" % (VT0, i16))
    a("v_add_u32 v%d, s3, v%d" % (VT0, VT0))
    a("v_lshrrev_b32 v%d, 1, v%d" % (VT1, i16))
    for ks in range(2):
        a("v_add_u32 v%d, %d, v%d" % (VT2, 4 * ks, g))
        a("v_xor_b32 v%d, v%d, v%d" % (VT2, VT2, VT1))
        a("v_lshl_add_u32 v%d, v%d, 4, v%d" % (OADDR + ks, VT2, VT0))
    a("v_lshrrev_b32 v%d, 2, v%d" % (VT0, i16))
    a("v_and_b32 v%d, 1, v%d" % (VT1, g))
    a("v_lshl_add_u32 v%d, v%d, 2, v%d" % (VT0, VT1, VT0))
    a("v_lshrrev_b32 v%d, 1, v%d" % (VT1, g))
    a("v_lshl_add_u32 v%d, v%d, 4, v%d" % (VT0, VT1, VT0))
    a("v_mul_u32_u24 v%d, 288, v%d" % (VT0, VT0))
    a("v_and_b32 v%d, 3, v%d" % (VT1, i16))
    a("v_lshl_add_u32 v%d, v%d, 3, v%d" % (VT0, VT1, VT0))
    a("s_mul_i32 s3, s%d, 160" % S_CH)
    a("s_add_u32 s3, s3, %d" % WOST)
    a("v_add_u32 v%d, s3, v%d" % (WADDR, VT0))
    a("s_waitcnt lgkmcnt(0)")
    a("s_mul_i32 s4, s5, 10485760"); a("s_mul_i32 s3, s7, 1310720"); a("s_add_u32 s4, s4, s3")
    a("s_lshl_b32 s3, s%d, 11" % S_KQ); a("s_add_u32 s4, s4, s3")
    a("s_add_u32 s%d, s%d, s4" % (SRD_O, S_WS)); a("s_addc_u32 s%d, s%d, 0" % (SRD_O + 1, S_WS + 1))
    a("s_mov_b32 s%d, %d" % (SRD_O + 2, 159 * 8192 + 2048)); a("s_mov_b32 s%d, 0x20000" % (SRD_O + 3))
    a("s_mul_i32 s4, s%d, %d" % (S_KQ, 1024 * 1152)); a("s_mul_i32 s3, s6, 288"); a("s_add_u32 s4, s4, s3")
    a("s_add_u32 s%d, s60, s4" % SRD_W); a("s_addc_u32 s%d, s61, 0" % (SRD_W + 1))
    a("s_mov_b32 s%d, %d" % (S_WSZ, 1023 * 1152 + 288))
    a("s_mov_b32 s%d, s%d" % (SRD_W + 2, S_WSZ)); a("s_mov_b32 s%d, 0x20000" % (SRD_W + 3))
    a("s_mul_i32 s4, s%d, %d" % (S_GRP, 4 * 90 * 1024)); a("s_add_u32 s4, s4, %d" % PART_OFF)
    a("s_add_u32 s%d, s%d, s4" % (SRD_P, S_WS)); a("s_addc_u32 s%d, s%d, 0" % (SRD_P + 1, S_WS + 1))
    a("s_mov_b32 s%d, %d" % (SRD_P + 2, 4 * 90 * 1024)); a("s_mov_b32 s%d, 0x20000" % (SRD_P + 3))
    a("s_mul_i32 s4, s7, %d" % (160 * 2304)); a("s_mul_i32 s3, s5, 1152"); a("s_add_u32 s4, s4, s3")
    a("s_mul_i32 s3, s6, 288"); a("s_add_u32 s4, s4, s3")
    a("s_add_u32 s%d, s64, s4" % SRD_OUT); a("s_addc_u32 s%d, s65, 0" % (SRD_OUT + 1))
    a("s_mov_b32 s%d, %d" % (SRD_OUT + 2, 159 * 2304 + 288)); a("s_mov_b32 s%d, 0x20000" % (SRD_OUT + 3))
    a("s_mov_b32 s%d, s66" % S_DBG); a("s_mov_b32 s%d, s67" % (S_DBG + 1))

    a("s_mov_b32 s%d, 0" % S_STG); a("s_mov_b32 s%d, 0" % S_OOFF); a("s_mov_b32 s%d, 0" % S_WOFF)
    a("s_cmp_lt_u32 s%d, 2" % S_W)
    a("s_cbranch_scc0 K2_V1")
    for var in (0, 1):
        NT_ = 5 if var == 0 else 4
        NW_ = 5 if var == 0 else 4
        n = 5 + NW_
        if var == 1:
            a.label("K2_V1")
        def stage_dma(buf):
            l = []
            l.append("s_add_u32 m0, s%d, %d" % (S_M0O, OST + buf * 20480))
            l.append("s_nop 0")
            for i in range(4):
                pass
            l = []
            for i in range(5):
                l.append("s_add_u32 m0, s%d, %d" % (S_M0O, OST + buf * 20480 + i * 1024))
                l.append("s_nop 0")
                l.append("buffer_load_dwordx4 v%d, %s, s%d offen lds" % (OOFF + i, sr(SRD_O, 4), S_OOFF))
            for i in range(NW_):
                l.append("s_add_u32 m0, s%d, %d" % (S_M0W, buf * 18432 + i * 1024))
                l.append("s_nop 0")
                l.append("buffer_load_dwordx4 v%d, %s, s%d offen lds" % (WOFF + i, sr(SRD_W, 4), S_WOFF))
            l += ["s_add_u32 s%d, s%d, 1" % (S_STG, S_STG),
                  "s_add_u32 s%d, s%d, 128" % (S_OOFF, S_OOFF),
                  "s_add_u32 s%d, s%d, %d" % (S_WOFF, S_WOFF, 64 * 1152),
                  "s_cmp_lt_u32 s%d, 16" % S_STG,
                  "s_cselect_b32 s%d, %d, 0" % (SRD_O + 2, 159 * 8192 + 2048),
                  "s_cselect_b32 s%d, s%d, 0" % (SRD_W + 2, S_WSZ)]
            return l
        def frag_reads(ks, p):
            l = []
            for j in range(5):
                l.append("ds_read_b128 %s, v%d offset:%d" % (vr(BF(p, j), 4), OADDR + ks, j * 16 * 128))
            for T in range(NT_):
                for h in range(2):
                    l.append("ds_read_b64_tr_b16 %s, v%d offset:%d" % (vr(AF(p, T) + 2 * h, 2), WADDR, ks * 32 * 288 + h * 8 * 288 + T * 32))
            return l
        def adv_addr(buf_next):
            do = 20480 if buf_next != 0 else -3 * 20480
            dw = 18432 if buf_next != 0 else -3 * 18432
            return ["v_add_u32 v%d, %d, v%d" % (OADDR, do, OADDR), "v_add_u32 v%d, %d, v%d" % (OADDR + 1, do, OADDR + 1),
                    "v_add_u32 v%d, %d, v%d" % (WADDR, dw, WADDR)]
        def mf(p):
            return [mfma(ACC(T, j), AF(p, T), BF(p, j), ACC(T, j)) for T in range(NT_) for j in range(5)]
        for st in range(4):
            for ins in stage_dma(st): a(ins)
        for r in range(NT_ * 20):
            a("v_mov_b32 v%d, 0" % (16 + r))
        a("s_waitcnt vmcnt(%d)" % (3 * n))
        a("s_barrier")
        stamp(1)
        for ins in frag_reads(0, 0): a(ins)
        a("s_mov_b32 s%d, 0" % S_CNT)
        lab = "K2_L%d" % var
        a.label(lab)
        for st in range(4):
            a("s_waitcnt lgkmcnt(0)")
            for ins in interleave(mf(0), [(frag_reads(1, 1), 0.0, 0.7)]): a(ins)
            a("s_waitcnt vmcnt(%d) lgkmcnt(0)" % (2 * n))
            a("s_barrier")
            for ins in adv_addr((st + 1) & 3): a(ins)
            for ins in interleave(mf(1), [(frag_reads(0, 0), 0.0, 0.7), (stage_dma(st), 0.0, 1.0)]): a(ins)
        a("s_add_u32 s%d, s%d, 1" % (S_CNT, S_CNT))
        a("s_cmp_lt_u32 s%d, 4" % S_CNT)
        a("s_cbranch_scc1 %s" % lab)
        stamp(2)
        a("s_nop 7")
        a("s_mul_i32 s3, s%d, %d" % (S_KQ, 90 * 1024))
        a("s_mul_i32 s4, s%d, %d" % (S_RH, 45 * 1024)); a("s_add_u32 s3, s3, s4")
        a("s_mul_i32 s4, s%d, %d" % (S_CH, 5 * 1024)); a("s_add_u32 s3, s3, s4")
        a("v_lshlrev_b32 v%d, 4, v%d" % (VT0, lane))
        for j in range(5):
            for T in range(NT_):
                a("s_add_u32 s4, s3, %d" % ((j * 9 + T) * 1024))
                a("buffer_store_dwordx4 %s, v%d, %s, s4 offen sc0 sc1" % (vr(ACC(T, j), 4), VT0, sr(SRD_P, 4)))
        if var == 0:
            a("s_branch K2_X")
    a.label("K2_X")
    a("s_waitcnt vmcnt(0)")
    a("s_barrier")
    stamp(3)
    a("s_cmp_lg_u32 s%d, 0" % S_W)
    a("s_cbranch_scc1 K2_WAITED")
    a("s_lshl_b32 s3, s%d, 2" % S_GRP)
    a("v_mov_b32 v%d, s3" % VT1)
    a("v_mov_b32 v%d, 1" % VT2)
    a("v_cmp_eq_u32 vcc, 0, v%d" % lane)
    a("s_and_saveexec_b64 s[70:71], vcc")
    a("global_atomic_add v%d, v%d, %s sc1" % (VT1, VT2, sr(S_DBG, 2)))
    a("s_mov_b32 s%d, 0" % S_CNT)
    a.label("K2_POLL")
    a("global_load_dword v%d, v%d, %s sc0 sc1" % (VT3, VT1, sr(S_DBG, 2)))
    a("s_waitcnt vmcnt(0)")
    a("v_readfirstlane_b32 s3, v%d" % VT3)
    a("s_add_u32 s%d, s%d, 1" % (S_CNT, S_CNT))
    a("s_cmp_ge_u32 s3, 4")
    a("s_cbranch_scc1 K2_POLLED")
    a("s_sleep 2")
    a("s_cmp_lt_u32 s%d, 0x400000" % S_CNT)
    a("s_cbranch_scc1 K2_POLL")
    a.label("K2_POLLED")
    a("s_mov_b64 exec, s[70:71]")
    a.label("K2_WAITED")
    a("s_barrier")
    stamp(4)
    a("s_mul_i32 s3, s%d, 45" % S_KQ); a("s_add_u32 s3, s3, 1"); a("s_lshr_b32 s3, s3, 1")
    a("s_add_u32 s4, s%d, 1" % S_KQ); a("s_mul_i32 s4, s4, 45"); a("s_add_u32 s4, s4, 1"); a("s_lshr_b32 s4, s4, 1")
    a("s_add_u32 s3, s3, s%d" % S_W)
    a("v_lshlrev_b32 v%d, 4, v%d" % (VT0, lane))
    a("v_mul_u32_u24 v%d, 2304, v%d" % (VT1, i16))
    a("v_lshl_add_u32 v%d, v%d, 3, v%d" % (VT1, g, VT1))
    NF = 6
    for i in range(NF):
        a("s_add_u32 s8, s3, %d" % (4 * i))
        a("s_cmp_lt_u32 s8, s4")
        a("s_cselect_b32 s9, s8, 0")
        a("s_lshl_b32 s9, s9, 10")
        for src in range(4):
            a("s_add_u32 s10, s9, %d" % (src * 90 * 1024))
            a("buffer_load_dwordx4 %s, v%d, %s, s10 offen sc0 sc1" % (vr(16 + (i * 4 + src) * 4, 4), VT0, sr(SRD_P, 4)))
    for i in range(NF):
        a("s_waitcnt vmcnt(%d)" % ((NF - 1 - i) * 4 + i))
        r = 16 + i * 16
        for c in range(4):
            a("v_add_f32 v%d, v%d, v%d" % (r + c, r + c, r + 4 + c))
            a("v_add_f32 v%d, v%d, v%d" % (r + c, r + c, r + 8 + c))
            a("v_add_f32 v%d, v%d, v%d" % (r + c, r + c, r + 12 + c))
        a("v_cvt_pk_bf16_f32 v%d, v%d, v%d" % (r, r, r + 1))
        a("v_cvt_pk_bf16_f32 v%d, v%d, v%d" % (r + 1, r + 2, r + 3))
        a("s_add_u32 s8, s3, %d" % (4 * i))
        a("s_mul_hi_u32 s9, s8, 0x%x" % ((1 << 32) // 9 + 1))
        a("s_mul_i32 s10, s9, 9"); a("s_sub_u32 s10, s8, s10")
        a("s_mul_i32 s9, s9, %d" % (16 * 2304)); a("s_lshl_b32 s10, s10, 5"); a("s_add_u32 s9, s9, s10")
        a("s_cmp_lt_u32 s8, s4")
        a("s_cselect_b32 s9, s9, 0x7ff00000")
        a("buffer_store_dwordx2 %s, v%d, %s, s9 offen" % (vr(r, 2), VT1, sr(SRD_OUT, 4)))
    stamp(5)
    a("s_waitcnt vmcnt(0)")
    stamp(6)
    stamp(7)
    if prof:
        a("s_waitcnt lgkmcnt(0)")
        a("s_add_u32 s72, s%d, %d" % (S_WS, 201 << 20)); a("s_addc_u32 s73, s%d, 0" % (S_WS + 1))
        a("s_mov_b32 s74, 0x100000"); a("s_mov_b32 s75, 0x20000")
        a("s_lshl_b32 s3, s2, 2"); a("s_add_u32 s3, s3, s%d" % S_W); a("s_lshl_b32 s3, s3, 5")
        for i in range(8):
            a("v_mov_b32 v%d, s%d" % (16 + i, 80 + 2 * i))
        a("v_mov_b32 v%d, 0" % VT0)
        a("v_cmp_eq_u32 vcc, 0, v%d" % VLANE)
        a("s_and_saveexec_b64 s[76:77], vcc")
        a("buffer_store_dwordx4 v[16:19], v%d, s[72:75], s3 offen" % VT0)
        a("buffer_store_dwordx4 v[20:23], v%d, s[72:75], s3 offen offset:16" % VT0)
        a("s_waitcnt vmcnt(0)")
    a.label("K2_END")
    a("s_endpgm")
```

```python
import sys
from asmlib import *
import k1, k2
def build(out, prof=False, exp=()):
    k1.EXP.clear(); k1.EXP.update(exp)
    a = Asm()
    hdr = open('concat_heads__mha_block_cached__gqa_block_cached__near_ridge.s.ref').read().split("\n")
    for l in hdr:
        if l.startswith("; Override") : break
        a.raw(l)
    a.raw("; @launch kernel=k1_kernel grid=(256,1,1) block=(256,1,1) lds=%d" % k1.LDS_BYTES)
    a.raw("; @launch kernel=k2_kernel grid=(256,1,1) block=(256,1,1) lds=%d" % k2.K2_LDS)
    a.raw('.amdgcn_target "amdgcn-amd-amdhsa--gfx950"')
    k1.gen_k1(a, prof=prof)
    k2.gen_k2(a, prof=prof)
    kernel_desc(a, "k1_kernel", 512, accum=256)
    kernel_desc(a, "k2_kernel", 256, accum=256)
    open(out, "w").write(a.text())
if __name__ == "__main__":
    out = sys.argv[1]
    build(out, prof="prof" in sys.argv[2:], exp=[x for x in sys.argv[2:]])
```
